```python
import torch

def _softmax(x, axis=-1):
    return torch.softmax(x, dim=axis)
def _gelu(x):
    return torch.nn.functional.gelu(x, approximate="tanh")
def _silu(x):
    return torch.nn.functional.silu(x)
def _sigmoid(x):
    return torch.sigmoid(x)
def _layernorm(x, axis=-1, eps=1e-5):
    m = x.mean(dim=axis, keepdim=True)
    v = x.var(dim=axis, keepdim=True, unbiased=False)
    return (x - m) / torch.sqrt(v + eps)
def _scatter_add(tgt, idx, src, axis=0):
    return tgt.clone().index_add_(axis, idx, src)
def _segment_sum(src, seg, n):
    out = torch.zeros((n,) + src.shape[1:], dtype=src.dtype)
    return out.index_add_(0, seg, src)
def _pad(x, pw):
    flat = tuple(v for pair in reversed(pw) for v in pair)
    return torch.nn.functional.pad(x, flat)

kernel_name = 'parallel_sum__softmax_full_mha__dense_activation_gelu__prompt'

def setup_inputs():

    _w = (lambda a: (lambda t: t.to(torch.bfloat16) if t.is_floating_point() else t)(torch.as_tensor(a)))
    def _A_setup():
        B, S, D = 1, 2048, 512
        return {
            "x": _w((lambda *s: torch.randn(*s, dtype=torch.bfloat16) * 0.05)(B, S, D)),
            "wqkv": _w((lambda *s: torch.randn(*s, dtype=torch.bfloat16) * 0.05)(D, 3 * D)),
            "wo": _w((lambda *s: torch.randn(*s, dtype=torch.bfloat16) * 0.05)(D, D)),
        }
    _A_in = _A_setup()

    def _B_setup():
        B, S, D, F = 1, 2048, 512, 1792
        return {
            "x": _w((lambda *s: torch.randn(*s, dtype=torch.bfloat16) * 0.05)(B, S, D)),
            "w1": _w((lambda *s: torch.randn(*s, dtype=torch.bfloat16) * 0.8)(D, F) * (D ** -0.5)),
            "b1": _w((lambda *s: torch.randn(*s, dtype=torch.bfloat16) * 12.8)(F) * 0.01),
            "w2": _w((lambda *s: torch.randn(*s, dtype=torch.bfloat16) * 0.8)(F, D) * (F ** -0.5)),
            "b2": _w((lambda *s: torch.randn(*s, dtype=torch.bfloat16) * 12.8)(D) * 0.01),
        }
    _B_in = _B_setup()

    return {
        "A_x": _A_in["x"],
        "A_wqkv": _A_in["wqkv"],
        "A_wo": _A_in["wo"],
        "B_x": _B_in["x"],
        "B_w1": _B_in["w1"],
        "B_b1": _B_in["b1"],
        "B_w2": _B_in["w2"],
        "B_b2": _B_in["b2"],
    }

def reference(A_x, A_wqkv, A_wo, B_x, B_w1, B_b1, B_w2, B_b2):
    def _A_ref(x, wqkv, wo):
        B, S, D = x.shape
        H = 32; Dh = D // H
        qkv = (lambda x, *d: x.permute(*d))((x @ wqkv).reshape(B, S, 3, H, Dh), 2, 0, 3, 1, 4)
        q, k, v = qkv[0], qkv[1], qkv[2]
        scale = Dh ** -0.5
        scores = torch.einsum("bhqd,bhkd->bhqk", q, k) * scale
        p = _softmax(scores, axis=-1)
        o = torch.einsum("bhqk,bhkd->bhqd", p, v)
        return (lambda x, *d: x.permute(*d))(o, 0, 2, 1, 3).reshape(B, S, D) @ wo

    def _B_ref(x, w1, b1, w2, b2):
        h = torch.einsum("bsd,df->bsf", x, w1) + b1
        h = _gelu(h)
        return torch.einsum("bsf,fd->bsd", h, w2) + b2

    x = A_x
    xn = _layernorm(x, axis=-1)
    return x + _A_ref(xn, A_wqkv, A_wo) + _B_ref(xn, B_w1, B_b1, B_w2, B_b2)
```

```python
import sys, os, subprocess, struct, ctypes
sys.path.insert(0, "cdna_kernels")
import numpy as np

KD = """
.section .rodata,"a"
.p2align 6
.amdhsa_kernel mb_kernel
  .amdhsa_next_free_vgpr {vgpr}
  .amdhsa_next_free_sgpr 96
  .amdhsa_accum_offset {acc}
  .amdhsa_group_segment_fixed_size 0
  .amdhsa_kernarg_size 16
  .amdhsa_user_sgpr_count 2
  .amdhsa_user_sgpr_kernarg_segment_ptr 1
  .amdhsa_system_sgpr_workgroup_id_x 1
.end_amdhsa_kernel
"""

def gen(bodies, nwaves, iters, grid, vgpr=128, lds=65536, init=""):
    s = []
    s.append(f"; @launch grid=({grid},1,1) block=({nwaves*64},1,1) lds={lds}")
    s.append('.amdgcn_target "amdgcn-amd-amdhsa--gfx950"')
    s.append(".text\n.globl mb_kernel\n.p2align 8\n.type mb_kernel,@function\nmb_kernel:")
    s.append("s_load_dwordx2 s[4:5], s[0:1], 0")
    s.append("v_lshrrev_b32 v1, 6, v0")
    s.append("s_nop 1")
    s.append("v_readfirstlane_b32 s6, v1")
    s.append("v_and_b32 v2, 63, v0")
    s.append("v_lshlrev_b32 v3, 4, v2")
    for r in range(4, vgpr):
        s.append(f"v_mov_b32 v{r}, 0.5")
    s.append(init)
    s.append("s_waitcnt lgkmcnt(0)")
    s.append("s_lshr_b32 s7, s6, 2")
    nb = len(bodies)
    s.append(f"s_and_b32 s7, s7, {nb-1}" if nb > 1 else "s_mov_b32 s7, 0")
    s.append(f"s_mov_b32 s10, {iters}")
    s.append("s_barrier")
    s.append("s_memtime s[8:9]")
    s.append("s_waitcnt lgkmcnt(0)")
    for i in range(nb):
        s.append(f"s_cmp_eq_u32 s7, {i}")
        s.append(f"s_cbranch_scc1 L_body{i}")
    s.append("s_branch L_end")
    for i, b in enumerate(bodies):
        s.append(".p2align 6")
        s.append(f"L_body{i}:")
        s.append(b)
        s.append("s_sub_u32 s10, s10, 1")
        s.append("s_cmp_lg_u32 s10, 0")
        s.append(f"s_cbranch_scc1 L_body{i}")
        s.append("s_branch L_end")
    s.append("L_end:")
    s.append("s_waitcnt vmcnt(0) lgkmcnt(0)")
    s.append("s_memtime s[12:13]")
    s.append("s_waitcnt lgkmcnt(0)")
    s.append("s_sub_u32 s12, s12, s8")
    s.append(f"s_mul_i32 s14, s2, {nwaves}")
    s.append("s_add_u32 s14, s14, s6")
    s.append("s_lshl_b32 s14, s14, 2")
    s.append("v_mov_b32 v4, s14")
    s.append("v_mov_b32 v5, s12")
    s.append("s_mov_b64 exec, 1")
    s.append("global_store_dword v4, v5, s[4:5]")
    s.append("s_endpgm")
    acc = (vgpr + 3)//4*4
    s.append(KD.format(vgpr=vgpr, acc=acc))
    return "\n".join(s)

def run(name, asm, nwaves, grid, lds, reps=3):
    from cdna_launch import with_harness_metadata, AsmKernel, DeviceBuffer, pack_ptr_kernargs, _hip, _check
    p = f"bench/{name}"
    open(p + ".hs", "w").write(with_harness_metadata(asm, "mb_kernel", 2))
    r = subprocess.run(["clang", "-x", "assembler", "-target", "amdgcn-amd-amdhsa", "-mcpu=gfx950", p + ".hs", "-o", p + ".co"], capture_output=True, text=True)
    if r.returncode != 0:
        print("ASM FAIL", name, r.stderr[:2000]); return None
    if not os.path.exists('/dev/kfd'):
        return None
    k = AsmKernel(p + ".co", "mb_kernel")
    out = DeviceBuffer(grid * nwaves * 4)
    scratch = DeviceBuffer(64 << 20)
    ka = pack_ptr_kernargs([out.ptr, scratch.ptr])
    res = None
    for _ in range(reps):
        k.launch((grid, 1, 1), (nwaves * 64, 1, 1), ka, lds)
        _check(_hip.hipDeviceSynchronize())
        res = out.to_numpy(np.uint32, (grid, nwaves))
    k.unload()
    return res
```

```python
from mb import *
IT = 300
REP = 16
def rep(fmt, n, base=8, step=1, R=REP):
    one = "\n".join(fmt.format(r=base + i*step, r1=base+i*step+1, r2=base+i*step+2, r3=base+i*step+3) for i in range(n))
    return "\n".join([one]*R)
ex = rep("v_exp_f32 v{r}, v{r}", 16)
sm = "\n".join(["\n".join(f"v_smfmac_f32_32x32x32_bf16 v[{64+16*i}:{79+16*i}], v[8:11], v[12:19], v20" for i in range(4))]*REP)
sm1 = "\n".join(["\n".join(f"v_smfmac_f32_32x32x32_bf16 v[64:79], v[8:11], v[12:19], v20" for i in range(4))]*REP)
for name, body in (("smfmac4acc", sm), ("smfmac1acc", sm1)):
    out = []
    for nw in (4, 8):
        asm = gen([body], nw, IT, 1)
        res = run(f"t_{name}_{nw}", asm, nw, 1, 65536)
        if res is not None:
            n = body.count("\n") + 1
            out.append(f"w{nw}: {res.max()/IT/n/(nw//4):6.2f}")
    print(f"{name:14s} per-SIMD cyc/instr ", "  ".join(out))
asm = gen([ex, sm], 8, IT, 1)
res = run("p_exp_sm", asm, 8, 1, 65536)
if res is not None:
    print(f"pair exp16+smfmac4: A={res[0,:4].mean()/IT/REP:7.1f} B={res[0,4:].mean()/IT/REP:7.1f}")
def attn_iter(sa, sb, kf, vf, off, lds=True):
    L = []
    L.append(f"v_mfma_f32_32x32x16_bf16 v[{sb}:{sb+15}], v[{kf}:{kf+3}], v[80:83], 0")
    if lds:
        L.append(f"ds_read_b128 v[{kf}:{kf+3}], v3 offset:{off}")
    for i in range(8): L.append(f"v_exp_f32 v{sa+i}, v{sa+i}")
    L.append(f"v_exp_f32 v{sa+8}, v{sa+8}")
    L.append(f"v_exp_f32 v{sa+9}, v{sa+9}")
    if lds: L.append("s_waitcnt lgkmcnt(3)")
    L.append(f"v_smfmac_f32_32x32x32_bf16 v[64:79], v[{vf}:{vf+3}], v[{sa}:{sa+7}], v84")
    for i in range(10, 16): L.append(f"v_exp_f32 v{sa+i}, v{sa+i}")
    L.append("s_nop 1")
    L.append(f"v_smfmac_f32_32x32x32_bf16 v[64:79], v[{vf+4}:{vf+7}], v[{sa+8}:{sa+15}], v84")
    if lds:
        L.append("s_mov_b64 exec, s[20:21]")
        L.append(f"ds_read_b128 v[{vf}:{vf+3}], v3 offset:{off+1024}")
        L.append(f"ds_read_b128 v[{vf+4}:{vf+7}], v3 offset:{off+2048}")
        L.append("s_mov_b64 exec, -1")
    return L
init = "s_mov_b32 s20, 0xffff\ns_mov_b32 s21, 0xffff\nv_mov_b32 v84, 0xdddd"
for lds in (False, True):
    body = []
    for u in range(8):
        body += attn_iter(32, 48, 8, 16, (2*u)*4096 % 65536, lds)
        body += attn_iter(48, 32, 12, 24, (2*u+1)*4096 % 65536, lds)
    body = "\n".join(body)
    for nw in (4, 8, 12, 16):
        for grid in (1, 256):
            asm = gen([body], nw, 100, grid, vgpr=96, init=init)
            res = run(f"attn_{lds}_{nw}_{grid}", asm, nw, grid, 65536)
            if res is not None:
                print(f"attn mock lds={lds} waves={nw} grid={grid}: per-SIMD cycles/block = {res.max()/100/16/(nw//4):7.1f}  (mean {res.mean()/100/16/(nw//4):7.1f})")
```

```python
from mb import *
IT = 50
init = "v_bfe_u32 v3, v2, 2, 2\nv_lshlrev_b32 v3, 6, v3\nv_bfe_u32 v4, v2, 4, 1\nv_lshl_add_u32 v3, v4, 5, v3\nv_and_b32 v4, 3, v2\nv_lshl_add_u32 v3, v4, 3, v3\nv_lshrrev_b32 v4, 5, v2\nv_lshl_add_u32 v3, v4, 11, v3"
WB = 144; X0 = 16
def rd(g, tl, nb):
    wb = WB + 8 * (g % nb)
    return [f"ds_read_b64_tr_b16 v[{wb+4*tl+2*u}:{wb+4*tl+2*u+1}], v3 offset:{(g%16)*1024 + tl*512 + u*256}" for u in range(2)]
def mf(g, tl, nb):
    wb = WB + 8 * (g % nb); acc = 192 + 16 * tl; xb = X0 + 4 * (g % 32)
    return f"v_mfma_f32_32x32x16_bf16 v[{acc}:{acc+15}], v[{wb+4*tl}:{wb+4*tl+3}], v[{xb}:{xb+3}], v[{acc}:{acc+15}]"
def variant(kind, la, nb):
    L = []
    N = 48
    for g in range(N):
        if kind == "burst":
            L += rd(g + la, 0, nb) + rd(g + la, 1, nb)
            L.append(f"s_waitcnt lgkmcnt({min(15, 4*la+2)})"); L.append(mf(g, 0, nb))
            L.append(f"s_waitcnt lgkmcnt({min(15, 4*la)})"); L.append(mf(g, 1, nb))
        elif kind == "spread":
            L += rd(g + la, 0, nb)
            L.append(f"s_waitcnt lgkmcnt({min(15, 4*la)})"); L.append(mf(g, 0, nb))
            L += rd(g + la, 1, nb)
            L.append(f"s_waitcnt lgkmcnt({min(15, 4*la)})"); L.append(mf(g, 1, nb))
        elif kind == "spread1w":
            L += rd(g + la, 0, nb)
            L.append(f"s_waitcnt lgkmcnt({min(15, 4*la-2)})"); L.append(mf(g, 0, nb))
            L += rd(g + la, 1, nb)
            L.append(mf(g, 1, nb))
        elif kind == "nomem":
            L.append(mf(g, 0, nb)); L.append(mf(g, 1, nb))
    return "\n".join(L), N
for kind, la, nb in (("nomem", 0, 4), ("burst", 3, 4), ("spread", 3, 4), ("spread", 2, 4), ("spread", 2, 3), ("spread1w", 3, 4), ("spread", 3, 6), ("burst", 3, 6), ("spread", 1, 4)):
    body, N = variant(kind, la, nb)
    for grid in (1, 256):
        asm = gen([body], 4, IT, grid, vgpr=256, init=init)
        res = run(f"ml_{kind}_{la}_{nb}_{grid}", asm, 4, grid, 65536)
        if res is not None:
            print(f"{kind} la={la} nb={nb} grid={grid}: cycles per item (2 MFMA) = {res.max()/IT/N:.1f}")
```

```python
import sys, os, subprocess
sys.path.insert(0, "cdna_kernels")
import numpy as np
from mb import KD
from cdna_launch import with_harness_metadata, AsmKernel, DeviceBuffer, pack_ptr_kernargs, _hip, _check
def build(mode):
    nw = 8
    L = []
    L.append(f"""; @launch grid=(256,1,1) block=({nw*64},1,1) lds=163840
.amdgcn_target "amdgcn-amd-amdhsa--gfx950"
.text
.globl mb_kernel
.p2align 8
.type mb_kernel,@function
mb_kernel:
s_load_dwordx4 s[4:7], s[0:1], 0
v_lshrrev_b32 v1, 6, v0
v_and_b32 v2, 63, v0
s_nop 0
v_readfirstlane_b32 s20, v1
v_lshlrev_b32 v3, 4, v2
v_lshlrev_b32 v5, 7, v2
s_getreg_b32 s29, hwreg(HW_REG_XCC_ID)
s_waitcnt lgkmcnt(0)
s_mov_b32 s8, s6
s_and_b32 s9, s7, 0xffff
s_mov_b32 s10, 0x10000000
s_mov_b32 s11, 0x20000
s_bfe_u32 s21, s2, 0x20003
s_and_b32 s22, s2, 3
s_lshl_b32 s22, s22, 2
s_add_u32 s21, s21, s22
s_lshl_b32 s21, s21, 17
s_lshr_b32 s23, s2, 5
s_lshl_b32 s22, s20, 14
s_add_u32 s26, s21, s22
s_lshl_b32 s24, s20, 14
s_barrier
s_memtime s[12:13]
s_waitcnt lgkmcnt(0)""")
    if mode in ("rot", "rotwait"):
        L.append("s_lshl_b32 s27, s23, 11\ns_add_u32 s26, s26, s27")
    if mode.startswith("touch"):
        L.append("s_lshl_b32 s27, s23, 14\ns_add_u32 s27, s27, s21\ns_and_b32 s28, s20, 1\ns_lshl_b32 s28, s28, 13\ns_add_u32 s27, s27, s28")
        L.append("buffer_load_dword v6, v5, s[8:11], s27 offen")
        if mode == "touchwait":
            L.append("s_waitcnt vmcnt(0)")
    for i in range(16):
        L.append(f"s_add_u32 m0, s24, {i*1024}")
        L.append(f"s_xor_b32 s25, s26, {i*1024}")
        L.append(f"buffer_load_dwordx4 v3, s[8:11], s25 offen lds")
        if mode == "rotwait" and i == 1:
            L.append("s_waitcnt vmcnt(0)")
    L.append("""s_waitcnt vmcnt(0)
s_barrier
s_memtime s[14:15]
s_waitcnt lgkmcnt(0)
s_sub_u32 s14, s14, s12
s_lshl_b32 s17, s2, 3
v_mov_b32 v1, s17
v_mov_b32 v2, s14
v_mov_b32 v3, s29
v_cmp_eq_u32 vcc, 0, v0
s_and_saveexec_b64 s[20:21], vcc
s_cbranch_execz E
global_store_dwordx2 v1, v[2:3], s[4:5]
E:
s_endpgm
""" + KD.format(vgpr=256, acc=256))
    return "\n".join(L)
gpu = os.path.exists('/dev/kfd')
if gpu:
    out = DeviceBuffer(2048); src = DeviceBuffer(256 << 20); big = DeviceBuffer(512 << 20)
for mode in ("plain", "rot", "rotwait", "touch", "touchwait"):
    p = f"co_{mode}"
    open(p + ".hs", "w").write(with_harness_metadata(build(mode), "mb_kernel", 2))
    r = subprocess.run(["clang", "-x", "assembler", "-target", "amdgcn-amd-amdhsa", "-mcpu=gfx950", p + ".hs", "-o", p + ".co"], capture_output=True, text=True)
    assert r.returncode == 0, r.stderr
    if not gpu: continue
    k = AsmKernel(p + ".co", "mb_kernel")
    res = []
    for cold in (1, 1, 1, 0):
        if cold:
            _check(_hip.hipMemsetAsync(big._ptr, 1, 512 << 20, None))
        k.launch((256,1,1), (512,1,1), pack_ptr_kernargs([out.ptr, src.ptr]), 163840)
        _check(_hip.hipDeviceSynchronize())
        d = out.to_numpy(np.uint32, (256, 2))
        res.append((int(d[:,0].mean()), int(d[:,0].max())))
    print(mode, res, "xcc of first 24 wgs:", (d[:24,1] & 0xf).tolist(), "consistent:", all(len(set((d[i::8,1]&0xf).tolist()))==1 for i in range(8)))
    k.unload()
```

```python
import sys, os, subprocess
sys.path.insert(0, "cdna_kernels")
import numpy as np
from mb import KD
from cdna_launch import with_harness_metadata, AsmKernel, DeviceBuffer, pack_ptr_kernargs, _hip, _check
def build(stride):
    nw = 4
    L = []
    L.append(f"""; @launch grid=(256,1,1) block=({nw*64},1,1) lds=131072
.amdgcn_target "amdgcn-amd-amdhsa--gfx950"
.text
.globl mb_kernel
.p2align 8
.type mb_kernel,@function
mb_kernel:
s_load_dwordx4 s[4:7], s[0:1], 0
v_lshrrev_b32 v1, 6, v0
v_and_b32 v2, 63, v0
s_nop 0
v_readfirstlane_b32 s20, v1
s_mov_b32 s30, {stride}
v_lshrrev_b32 v4, 3, v2
v_and_b32 v5, 7, v2
v_lshlrev_b32 v5, 4, v5
v_mul_lo_u32 v3, v4, s30
v_add_u32 v3, v3, v5
s_waitcnt lgkmcnt(0)
s_mov_b32 s8, s6
s_and_b32 s9, s7, 0xffff
s_mov_b32 s10, 0x10000000
s_mov_b32 s11, 0x20000
s_lshr_b32 s21, s2, 5
s_lshl_b32 s21, s21, 7
s_mul_i32 s22, s20, {128*stride}
s_add_u32 s21, s21, s22
s_lshl_b32 s24, s20, 14
s_barrier
s_memtime s[12:13]
s_waitcnt lgkmcnt(0)""")
    for i in range(16):
        L.append(f"s_add_u32 m0, s24, {i*1024}")
        L.append(f"s_add_u32 s25, s21, {i*8*stride}")
        L.append(f"buffer_load_dwordx4 v3, s[8:11], s25 offen lds")
    L.append("""s_waitcnt vmcnt(0)
s_barrier
s_memtime s[14:15]
s_waitcnt lgkmcnt(0)
s_sub_u32 s14, s14, s12
s_lshl_b32 s17, s2, 2
v_mov_b32 v1, s17
v_mov_b32 v2, s14
v_cmp_eq_u32 vcc, 0, v0
s_and_saveexec_b64 s[20:21], vcc
s_cbranch_execz E
global_store_dword v1, v2, s[4:5]
E:
s_endpgm
""" + KD.format(vgpr=112, acc=112))
    return "\n".join(L)
gpu = os.path.exists('/dev/kfd')
if gpu:
    out = DeviceBuffer(1024); src = DeviceBuffer(256 << 20); big = DeviceBuffer(512 << 20)
for stride in (1024, 3072, 3584):
    p = f"cl_{stride}"
    open(p + ".hs", "w").write(with_harness_metadata(build(stride), "mb_kernel", 2))
    r = subprocess.run(["clang", "-x", "assembler", "-target", "amdgcn-amd-amdhsa", "-mcpu=gfx950", p + ".hs", "-o", p + ".co"], capture_output=True, text=True)
    assert r.returncode == 0, r.stderr
    if not gpu: continue
    k = AsmKernel(p + ".co", "mb_kernel")
    for cold in (1, 1, 1, 0):
        if cold:
            _check(_hip.hipMemsetAsync(big._ptr, 1, 512 << 20, None))
        k.launch((256,1,1), (256,1,1), pack_ptr_kernargs([out.ptr, src.ptr]), 131072)
        _check(_hip.hipDeviceSynchronize())
        d = out.to_numpy(np.uint32, (8, 32)).astype(np.float64)
        print(f"stride {stride} cold={cold}: 64 KB per WG, time by class:", d.mean(axis=1).astype(int))
    k.unload()
```

```python
import sys, os, subprocess, time
sys.path.insert(0, "cdna_kernels")
import numpy as np
from mb import KD
from cdna_launch import with_harness_metadata, AsmKernel, DeviceBuffer, pack_ptr_kernargs, _hip, _check
def build(body, n):
    return f"""; @launch grid=(256,1,1) block=(256,1,1) lds=0
.amdgcn_target "amdgcn-amd-amdhsa--gfx950"
.text
.globl mb_kernel
.p2align 8
.type mb_kernel,@function
mb_kernel:
s_load_dwordx4 s[4:7], s[0:1], 0
v_lshlrev_b32 v1, 4, v0
s_waitcnt lgkmcnt(0)
""" + "\n".join(f"global_load_dwordx4 v[{16+4*i}:{19+4*i}], v1, s[6:7] offset:{0}\nv_add_u32 v1, 4096, v1" for i in range(32)) + """
""" + "\n".join(f"v_mov_b32 v{r}, 0" for r in range(160, 224)) + f"""
v_mov_b32 v8, 0xdddd
s_waitcnt vmcnt(0)
s_barrier
s_memtime s[8:9]
s_memrealtime s[10:11]
s_mov_b32 s16, {n}
s_waitcnt lgkmcnt(0)
L:
{body}
s_sub_u32 s16, s16, 1
s_cmp_lg_u32 s16, 0
s_cbranch_scc1 L
s_memtime s[12:13]
s_memrealtime s[14:15]
s_waitcnt lgkmcnt(0)
s_sub_u32 s12, s12, s8
s_sub_u32 s14, s14, s10
s_lshl_b32 s17, s2, 3
v_mov_b32 v1, s17
v_mov_b32 v2, s12
v_mov_b32 v3, s14
v_cmp_eq_u32 vcc, 0, v0
s_and_saveexec_b64 s[20:21], vcc
s_cbranch_execz E
global_store_dwordx2 v1, v[2:3], s[4:5]
E:
s_endpgm
""" + KD.format(vgpr=256, acc=256)
b32 = "\n".join(f"v_mfma_f32_32x32x16_bf16 v[{160+16*(i&1)}:{175+16*(i&1)}], v[{16+4*(i%16)}:{19+4*(i%16)}], v[{80+4*((i>>1)%16)}:{83+4*((i>>1)%16)}], v[{160+16*(i&1)}:{175+16*(i&1)}]" for i in range(32))
b16 = "\n".join(f"v_mfma_f32_16x16x32_bf16 v[{160+4*(i&7)}:{163+4*(i&7)}], v[{16+4*((i>>1)%16)}:{19+4*((i>>1)%16)}], v[{80+4*(((i>>3)*2+(i&1))%16)}:{83+4*(((i>>3)*2+(i&1))%16)}], v[{160+4*(i&7)}:{163+4*(i&7)}]" for i in range(64))
bsm = "\n".join(f"v_smfmac_f32_32x32x32_bf16 v[{160+16*(i&1)}:{175+16*(i&1)}], v[{16+4*(i%16)}:{19+4*(i%16)}], v[{80+8*((i>>1)%8)}:{87+8*((i>>1)%8)}], v8" for i in range(32))
gpu = os.path.exists('/dev/kfd')
if gpu:
    rng = np.random.default_rng(0)
    f = rng.standard_normal(1 << 20).astype(np.float32)
    src = DeviceBuffer.from_numpy((f.view(np.uint32) >> 16).astype(np.uint16))
    out = DeviceBuffer(2048); big = DeviceBuffer(512 << 20)
for name, body in (("32x32x16", b32), ("16x16x32", b16), ("smfmac32", bsm)):
    p = f"en_{name}"
    open(p + ".hs", "w").write(with_harness_metadata(build(body, 16), "mb_kernel", 2))
    r = subprocess.run(["clang", "-x", "assembler", "-target", "amdgcn-amd-amdhsa", "-mcpu=gfx950", p + ".hs", "-o", p + ".co"], capture_output=True, text=True)
    assert r.returncode == 0, r.stderr
    if not gpu: continue
    k = AsmKernel(p + ".co", "mb_kernel")
    for mode in ("idle", "idle", "memset", "memset"):
        if mode == "idle": time.sleep(0.05)
        else: _check(_hip.hipMemsetAsync(big._ptr, 1, 512 << 20, None))
        k.launch((256,1,1), (256,1,1), pack_ptr_kernargs([out.ptr, src.ptr]), 0)
        _check(_hip.hipDeviceSynchronize())
        d = out.to_numpy(np.uint32, (256, 2)).astype(np.float64)
        print(f"{name} {mode}: cycles {d[:,0].mean():.0f} time {d[:,1].mean()/100:.2f} us clock {d[:,0].mean()/d[:,1].mean()*100:.0f} MHz")
```
